```python
import torch

def _softmax(x, axis=-1):
    return torch.softmax(x, dim=axis)
def _gelu(x):
    return torch.nn.functional.gelu(x, approximate="tanh")
def _silu(x):
    return torch.nn.functional.silu(x)
def _sigmoid(x):
    return torch.sigmoid(x)
def _layernorm(x, axis=-1, eps=1e-5):
    m = x.mean(dim=axis, keepdim=True)
    v = x.var(dim=axis, keepdim=True, unbiased=False)
    return (x - m) / torch.sqrt(v + eps)
def _scatter_add(tgt, idx, src, axis=0):
    return tgt.clone().index_add_(axis, idx, src)
def _segment_sum(src, seg, n):
    out = torch.zeros((n,) + src.shape[1:], dtype=src.dtype)
    return out.index_add_(0, seg, src)
def _pad(x, pw):
    flat = tuple(v for pair in reversed(pw) for v in pair)
    return torch.nn.functional.pad(x, flat)

kernel_name = 'gated_mix__softmax_full_mha__geglu_ffn__prompt'

def setup_inputs():

    _w = (lambda a: (lambda t: t.to(torch.bfloat16) if t.is_floating_point() else t)(torch.as_tensor(a)))
    def _A_setup():
        B, S, D = 1, 2048, 640
        return {
            "x": _w((lambda *s: torch.randn(*s, dtype=torch.bfloat16) * 0.05)(B, S, D)),
            "wqkv": _w((lambda *s: torch.randn(*s, dtype=torch.bfloat16) * 0.8)(D, 3 * D)),
            "wo": _w((lambda *s: torch.randn(*s, dtype=torch.bfloat16) * 0.05)(D, D)),
        }
    _A_in = _A_setup()

    def _B_setup():
        B, S, D, F = 1, 2048, 640, 1728
        return {
            "x": _w((lambda *s: torch.randn(*s, dtype=torch.bfloat16) * 0.05)(B, S, D)),
            "w_gate": _w((lambda *s: torch.randn(*s, dtype=torch.bfloat16) * 0.1)(D, F)),
            "w_up": _w((lambda *s: torch.randn(*s, dtype=torch.bfloat16) * 0.1)(D, F)),
            "w_down": _w((lambda *s: torch.randn(*s, dtype=torch.bfloat16) * 0.1)(F, D)),
        }
    _B_in = _B_setup()

    return {
        "A_x": _A_in["x"],
        "A_wqkv": _A_in["wqkv"],
        "A_wo": _A_in["wo"],
        "B_x": _B_in["x"],
        "B_w_gate": _B_in["w_gate"],
        "B_w_up": _B_in["w_up"],
        "B_w_down": _B_in["w_down"],
        "gate_w": _w((lambda *s: torch.randn(*s, dtype=torch.bfloat16) * 0.05)(640) * 16.0),
    }

def reference(A_x, A_wqkv, A_wo, B_x, B_w_gate, B_w_up, B_w_down, gate_w):
    def _A_ref(x, wqkv, wo):
        B, S, D = x.shape
        H = 32; Dh = D // H
        qkv = (lambda x, *d: x.permute(*d))((x @ wqkv).reshape(B, S, 3, H, Dh), 2, 0, 3, 1, 4)
        q, k, v = qkv[0], qkv[1], qkv[2]
        scale = Dh ** -0.5
        scores = torch.einsum("bhqd,bhkd->bhqk", q, k) * scale
        p = _softmax(scores, axis=-1)
        o = torch.einsum("bhqk,bhkd->bhqd", p, v)
        return (lambda x, *d: x.permute(*d))(o, 0, 2, 1, 3).reshape(B, S, D) @ wo

    def _B_ref(x, w_gate, w_up, w_down):
        return (_gelu(x @ w_gate) * (x @ w_up)) @ w_down

    x = A_x
    g = _sigmoid((x * gate_w).sum(-1, keepdims=True))
    a = _A_ref(x, A_wqkv, A_wo)
    b = _B_ref(x, B_w_gate, B_w_up, B_w_down)
    return g * a + (1 - g) * b
```

```python
import struct

NAME = "gated_mix__softmax_full_mha__geglu_ffn__prompt"

WS_KV = 0x0000000
WS_Q = 0x0600000
WS_A2 = 0x0A00000
WS_W2 = 0x1400000
WS_G = 0x1800000
WS_B = 0x1900000
WS_FL = 0x1A00000
WS_SIZE = 0x2000000
REC = 2688
QREC = 1280
NSTEP = 148
HUGE = 0x40000000


def fbits(x):
    return struct.unpack("<I", struct.pack("<f", x))[0]


def hx(x):
    return "0x%x" % (x & 0xFFFFFFFF)


class Asm:
    def __init__(self):
        self.L = []

    def __call__(self, s):
        for ln in s.split("\n"):
            ln = ln.strip()
            if not ln:
                continue
            if ln.endswith(":") or ln.startswith("."):
                self.L.append(ln)
            else:
                self.L.append("    " + ln)

    def ext(self, lines):
        for l in lines:
            self(l)

    def text(self):
        return "\n".join(self.L) + "\n"


def vr(a, n=1):
    return f"v{a}" if n == 1 else f"v[{a}:{a + n - 1}]"


def sr(a, n=1):
    return f"s{a}" if n == 1 else f"s[{a}:{a + n - 1}]"


def srd(a, base, lo, hi, nbytes):
    a(f"s_mov_b32 s{base}, s{lo}")
    a(f"s_mov_b32 s{base + 1}, s{hi}")
    a(f"s_mov_b32 s{base + 2}, {hx(nbytes)}")
    a(f"s_mov_b32 s{base + 3}, 0x00020000")


def interleave(mfmas, gaps, tail=None):
    out = []
    for i, m in enumerate(mfmas):
        out.append(m)
        if i < len(gaps):
            out.extend(gaps[i])
    for g in gaps[len(mfmas):]:
        out.extend(g)
    if tail:
        out.extend(tail)
    return out


def kernel_header(name):
    return f".globl {name}\n.p2align 8\n.type {name},@function\n{name}:\n"


def kernel_desc(name, nvgpr, accum=None, nsgpr=102):
    accum = accum or ((nvgpr + 3) // 4 * 4)
    return f""".section .rodata,"a"
.p2align 6
.amdhsa_kernel {name}
  .amdhsa_next_free_vgpr {nvgpr}
  .amdhsa_next_free_sgpr {nsgpr}
  .amdhsa_accum_offset {accum}
  .amdhsa_group_segment_fixed_size 0
  .amdhsa_kernarg_size 88
  .amdhsa_user_sgpr_count 2
  .amdhsa_user_sgpr_kernarg_segment_ptr 1
  .amdhsa_system_sgpr_workgroup_id_x 1
.end_amdhsa_kernel
.text
"""


def magic_div(a, dst, src, d, tmp_s, maxv):
    sh = 16
    m = (1 << sh) // d + 1
    assert all((v * m) >> sh == v // d for v in range(maxv + 1)), (d, maxv)
    assert maxv * m < (1 << 32) and m < (1 << 24)
    a(f"v_mul_u32_u24 v{dst}, {m}, v{src}")
    a(f"v_lshrrev_b32 v{dst}, {sh}, v{dst}")


import os
DBG = int(os.environ.get("DBG", "0"))
RT = int(os.environ.get("RT", "0"))
WS_DBG = 0x1F00000
SV = [255]


def stamp(a, i, base=96, force=False):
    if not DBG:
        return
    if DBG == 9:
        m = {3: 2, 4: 4, 6: 6, 7: 8, 10: 10}
        if i in m and not force:
            a(f"s_memtime s[{base}:{base + 1}]")
            a(f"s_memrealtime s[{base + 2}:{base + 3}]")
            a("s_waitcnt lgkmcnt(0)")
            a(f"v_writelane_b32 v{SV[0]}, s{base}, {m[i]}")
            a(f"v_writelane_b32 v{SV[0]}, s{base + 2}, {m[i] + 1}")
            return
    if (DBG == 3 and 2 <= i < 10 or DBG == 4 and i >= 2 or DBG >= 6 and 2 <= i < 13) and not force:
        return
    a(f"s_mem{'real' if RT and 2 <= i < 13 else ''}time s[{base}:{base + 1}]")
    a("s_waitcnt lgkmcnt(0)")
    a(f"v_writelane_b32 v{SV[0]}, s{base}, {i}")


def stamp2(a, i, base=96):
    a(f"s_memtime s[{base}:{base + 1}]")
    a(f"s_memrealtime s[{base + 2}:{base + 3}]")
    a("s_waitcnt lgkmcnt(0)")
    a(f"v_writelane_b32 v{SV[0]}, s{base}, {i}")
    a(f"v_writelane_b32 v{SV[0]}, s{base + 2}, {i + 1}")


def stamp_real(a, i, base=96):
    if not DBG:
        return
    a(f"s_memrealtime s[{base}:{base + 1}]")
    a("s_waitcnt lgkmcnt(0)")
    a(f"v_writelane_b32 v{SV[0]}, s{base}, {i}")


def stamp_store(a, kidx, swave, srdws, base=96):
    if not DBG:
        return
    t = SV[0] - 1
    a(f"s_lshl_b32 s{base}, s2, 4")
    a(f"s_add_u32 s{base}, s{base}, s{swave}")
    a(f"s_lshl_b32 s{base}, s{base}, 6")
    a(f"s_add_u32 s{base}, s{base}, {hx(WS_DBG + kidx * 0x40000)}")
    a(f"v_mbcnt_lo_u32_b32 v{t}, -1, 0")
    a(f"v_mbcnt_hi_u32_b32 v{t}, -1, v{t}")
    a(f"v_lshlrev_b32 v{t}, 2, v{t}")
    a("s_mov_b64 exec, 0xffff")
    a(f"buffer_store_dword v{SV[0]}, v{t}, s[{srdws}:{srdws + 3}], s{base} offen")
    a("s_mov_b64 exec, -1")


class VMQ:
    def __init__(self):
        self.q = []
        self.total = 0

    def issue(self, tag, n=1):
        self.q += [tag] * n
        self.total += n

    def mark(self, tag):
        self.marks = getattr(self, "marks", {})
        self.marks[tag] = self.total

    def after(self, tag):
        n = self.total - self.marks[tag]
        return n if n <= len(self.q) else None

    def need(self, *tags):
        last = -1
        for i, t in enumerate(self.q):
            if t in tags:
                last = i
        n = len(self.q) - 1 - last
        self.q = self.q[last + 1:]
        return n
```

```python
import sys, importlib
from common import *
HEAD = open("cdna_kernels/" + NAME + ".s.ref").read().split("; Override launch")[0]
def build(mods, path):
    launches, bodies = [], []
    for m in mods:
        mod = importlib.import_module(m)
        launches.append(mod.LAUNCH)
        bodies.append(mod.build())
    txt = HEAD + "\n".join(launches) + "\n" + '.amdgcn_target "amdgcn-amd-amdhsa--gfx950"\n.text\n' + "".join(bodies)
    open(path, "w").write(txt)
    return txt
if __name__ == "__main__":
    out = sys.argv[1]
    build(sys.argv[2:], out)
```
